```python
import torch

def _softmax(x, axis=-1):
    return torch.softmax(x, dim=axis)
def _gelu(x):
    return torch.nn.functional.gelu(x, approximate="tanh")
def _silu(x):
    return torch.nn.functional.silu(x)
def _sigmoid(x):
    return torch.sigmoid(x)
def _layernorm(x, axis=-1, eps=1e-5):
    m = x.mean(dim=axis, keepdim=True)
    v = x.var(dim=axis, keepdim=True, unbiased=False)
    return (x - m) / torch.sqrt(v + eps)
def _scatter_add(tgt, idx, src, axis=0):
    return tgt.clone().index_add_(axis, idx, src)
def _segment_sum(src, seg, n):
    out = torch.zeros((n,) + src.shape[1:], dtype=src.dtype)
    return out.index_add_(0, seg, src)
def _pad(x, pw):
    flat = tuple(v for pair in reversed(pw) for v in pair)
    return torch.nn.functional.pad(x, flat)

kernel_name = 'gated_mix__mha_block_cached__swiglu_ffn__decode'

def setup_inputs():

    _w = (lambda a: (lambda t: t.to(torch.bfloat16) if t.is_floating_point() else t)(torch.as_tensor(a)))
    def _A_setup():
        B, Sq, D = 8, 1, 576
        H, Sk, Dh = 32, 8192, 128
        return {
            "x": _w((lambda *s: torch.randn(*s, dtype=torch.bfloat16) * 0.05)(B, Sq, D)),
            "k_cache": _w((lambda *s: torch.randn(*s, dtype=torch.bfloat16) * 6.4)(B, H, Sk, Dh)),
            "v_cache": _w((lambda *s: torch.randn(*s, dtype=torch.bfloat16) * 0.4)(B, H, Sk, Dh)),
            "wq": _w((lambda *s: torch.randn(*s, dtype=torch.bfloat16) * 6.4)(D, H * Dh) * (D ** -0.5)),
            "wo": _w((lambda *s: torch.randn(*s, dtype=torch.bfloat16) * 0.4)(H * Dh, D) * ((H * Dh) ** -0.5)),
        }
    _A_in = _A_setup()

    def _B_setup():
        B, S, D, F = 8, 1, 576, 4608
        return {
            "x": _w((lambda *s: torch.randn(*s, dtype=torch.bfloat16) * 0.05)(B, S, D)),
            "w_gate": _w((lambda *s: torch.randn(*s, dtype=torch.bfloat16) * 0.05)(D, F)),
            "w_up": _w((lambda *s: torch.randn(*s, dtype=torch.bfloat16) * 0.05)(D, F)),
            "w_down": _w((lambda *s: torch.randn(*s, dtype=torch.bfloat16) * 0.05)(F, D)),
        }
    _B_in = _B_setup()

    return {
        "A_x": _A_in["x"],
        "A_k_cache": _A_in["k_cache"],
        "A_v_cache": _A_in["v_cache"],
        "A_wq": _A_in["wq"],
        "A_wo": _A_in["wo"],
        "B_x": _B_in["x"],
        "B_w_gate": _B_in["w_gate"],
        "B_w_up": _B_in["w_up"],
        "B_w_down": _B_in["w_down"],
        "gate_w": _w((lambda *s: torch.randn(*s, dtype=torch.bfloat16) * 0.05)(576) * 16.0),
    }

def reference(A_x, A_k_cache, A_v_cache, A_wq, A_wo, B_x, B_w_gate, B_w_up, B_w_down, gate_w):
    def _A_ref(x, k_cache, v_cache, wq, wo):
        B, Sq, D = x.shape
        H, Dh = 32, 128
        q = (lambda x, *d: x.permute(*d))((x @ wq).reshape(B, Sq, H, Dh), 0, 2, 1, 3)
        scores = torch.einsum("bhqd,bhkd->bhqk", q, k_cache) * (Dh ** -0.5)
        p = _softmax(scores, axis=-1)
        o = torch.einsum("bhqk,bhkd->bhqd", p, v_cache)
        return (lambda x, *d: x.permute(*d))(o, 0, 2, 1, 3).reshape(B, Sq, H * Dh) @ wo

    def _B_ref(x, w_gate, w_up, w_down):
        g = _silu(x @ w_gate)
        u = x @ w_up
        return (g * u) @ w_down

    x = A_x
    g = _sigmoid((x * gate_w).sum(-1, keepdims=True))
    a = _A_ref(x, A_k_cache, A_v_cache, A_wq, A_wo)
    b = _B_ref(x, B_w_gate, B_w_up, B_w_down)
    return g * a + (1 - g) * b
```

```python
import re
TRANS = ("v_exp_f32", "v_log_f32", "v_rcp_f32", "v_rsq_f32", "v_sqrt_f32", "v_sin_f32", "v_cos_f32")
def regs(tok):
    tok = tok.strip()
    tok = tok.lstrip("-")
    m = re.fullmatch(r"abs\((.*)\)", tok)
    if m: tok = m.group(1)
    m = re.fullmatch(r"([vsa])(\d+)", tok)
    if m: return {(m.group(1), int(m.group(2)))}
    m = re.fullmatch(r"([vsa])\[(\d+):(\d+)\]", tok)
    if m: return {(m.group(1), i) for i in range(int(m.group(2)), int(m.group(3)) + 1)}
    if tok == "vcc": return {("s", 106), ("s", 107)}
    if tok == "vcc_lo": return {("s", 106)}
    if tok == "vcc_hi": return {("s", 107)}
    if tok == "m0": return {("s", 124)}
    if tok == "exec": return {("s", 126), ("s", 127)}
    if tok == "exec_lo": return {("s", 126)}
    if tok == "exec_hi": return {("s", 127)}
    return set()
class I:
    def __init__(self, text, line):
        self.text = text; self.line = line
        t = text.split(";")[0].strip()
        parts = t.split(None, 1)
        self.op = parts[0]
        rest = parts[1] if len(parts) > 1 else ""
        ops = [o.strip() for o in re.split(r",(?![^\[]*\])", rest)] if rest else []
        self.mods = ""
        if ops:
            last = ops[-1].split(None, 1)
            ops[-1] = last[0]
            self.mods = last[1] if len(last) > 1 else ""
        self.ops = ops
        op = self.op
        self.mfma = op.startswith("v_mfma")
        self.valu = op.startswith("v_") and not self.mfma
        self.vmem = op.startswith(("buffer_", "global_"))
        self.ds = op.startswith("ds_")
        self.salu = op.startswith("s_")
        self.dpp = "_dpp" in op
        self.trans = op.replace("_e32", "").replace("_e64", "") in TRANS
        self.dot = op.startswith("v_dot")
        self.perml = op.startswith("v_permlane")
        self.rl = op.startswith(("v_readlane", "v_readfirstlane"))
        self.ws = 1
        if op == "s_nop": self.ws = int(ops[0], 0) + 1
        R = [regs(o) for o in ops]
        w = set(); r = set()
        if self.mfma:
            w = R[0]; self.A = R[1]; self.B = R[2]; self.C = R[3]; r = R[1] | R[2] | R[3]
            self.passes = 4 if "16x16x32" in op else 8
        elif self.valu:
            w = set(R[0])
            for x in R[1:]: r |= x
            if self.perml: w |= R[1]; r |= R[0]
            if op.startswith(("v_fmac", "v_dot2c", "v_writelane")) : r |= R[0]
            if self.dpp: r |= R[0]
            if op.startswith(("v_add_co", "v_addc_co", "v_sub_co")): w |= R[1]; r -= R[1]; r |= (R[4] if len(R) > 4 else set())
            if op.startswith("v_cndmask") and len(ops) == 3: r |= regs("vcc")
        elif self.vmem:
            lds = bool(re.search(r"\blds\b", self.mods))
            self.lds = lds
            if op.startswith(("buffer_wbl2", "buffer_inv")): pass
            elif "load" in op and not lds:
                w = R[0]
                for x in R[1:]: r |= x
            elif "atomic" in op:
                for x in R: r |= x
                if "sc0" in self.mods: w = R[0]
            else:
                for x in R: r |= x
            if lds: r |= regs("m0")
            self.wide = bool(re.search(r"store_dwordx[34]", op))
            self.data = R[0] if ("store" in op and op.startswith("buffer")) else (R[1] if "store" in op else set())
        elif self.ds:
            if op.startswith(("ds_read", "ds_bpermute", "ds_permute", "ds_swizzle")) or "_rtn" in op:
                w = R[0]
                for x in R[1:]: r |= x
            else:
                for x in R: r |= x
        elif self.salu:
            if op.startswith(("s_cmp", "s_cbranch", "s_branch", "s_waitcnt", "s_barrier", "s_nop", "s_sleep", "s_setprio", "s_endpgm", "s_bitcmp")):
                for x in R: r |= x
            else:
                if R: w = R[0]
                for x in R[1:]: r |= x
        self.w = w; self.r = r
def need(p, c):
    n = 0
    pv = {x for x in p.w if x[0] in "va"}; ps = {x for x in p.w if x[0] == "s"}
    if p.valu:
        if c.valu and c.dpp and pv & c.r: n = max(n, 2)
        if c.mfma and pv & c.r: n = max(n, 2)
        if c.valu and c.perml and pv & c.r: n = max(n, 2)
        if c.valu and c.rl and pv & c.r: n = max(n, 1)
        if p.trans and (c.valu or c.mfma) and not c.trans and pv & c.r: n = max(n, 1)
        if p.trans and c.trans and pv & c.r: n = max(n, 1)
        if p.dot and (c.valu or c.mfma or c.vmem or c.ds) and pv & (c.r | c.w):
            same = c.op == p.op and len(c.ops) == 4 and regs(c.ops[3]) == pv and not (pv & (regs(c.ops[1]) | regs(c.ops[2])))
            if not same: n = max(n, 3)
        if ps:
            if c.valu and ps & c.r: n = max(n, 4 if (c.rl or c.op.startswith("v_writelane")) else 2)
            if c.vmem and ps & c.r: n = max(n, 5)
            if ps & regs("exec") and (c.mfma or c.dpp): n = max(n, 5)
    if p.mfma:
        big = {4: 8, 8: 12}[p.passes]
        if c.mfma:
            if p.w & (c.A | c.B): n = max(n, big)
            if p.w & c.C and c.C != p.w: n = max(n, {4: 6, 8: 10}[p.passes])
            if p.w & c.w and not (p.w & c.C): n = max(n, big)
        elif (c.valu or c.vmem or c.ds) and p.w & (c.r | c.w): n = max(n, big)
        if c.valu and p.C & c.w: n = max(n, {4: 3, 8: 7}[p.passes])
    if p.salu and regs("m0") & p.w:
        if (c.vmem and getattr(c, "lds", False)) or (c.valu and regs("m0") & c.r): n = max(n, 1)
    if p.vmem and getattr(p, "wide", False) and p.data & c.w: n = max(n, 2)
    return n
def check(text):
    ins = []; labels = {}
    for ln, raw in enumerate(text.split("\n"), 1):
        t = raw.split(";")[0].strip()
        if not t or t.startswith("."): continue
        if t.endswith(":"):
            labels[t[:-1]] = len(ins); continue
        ins.append(I(t, ln))
    errs = []
    def succ(i):
        x = ins[i]
        if x.op == "s_endpgm": return []
        if x.op == "s_branch": return [labels[x.ops[0]]]
        if x.op.startswith("s_cbranch"): return [i + 1, labels[x.ops[0]]]
        return [i + 1]
    for i, p in enumerate(ins):
        if not (p.valu or p.mfma or p.vmem or (p.salu and regs("m0") & p.w)): continue
        stack = [(j, 0) for j in succ(i)]; seen = {}
        while stack:
            j, d = stack.pop()
            if j >= len(ins) or d >= 12: continue
            if j in seen and seen[j] <= d: continue
            seen[j] = d
            c = ins[j]
            n = need(p, c)
            if n > d: errs.append(f"line {p.line} '{p.text}' -> line {c.line} '{c.text}': need {n} have {d}")
            for k in succ(j): stack.append((k, d + c.ws))
    return errs
if __name__ == "__main__":
    import sys
    e = check(open(sys.argv[1]).read())
    print("\n".join(e) if e else "hazard check clean")
```

```python
import sys, os
sys.path.insert(0, os.path.dirname(os.path.abspath(__file__)))
import hazard
KNAME = "gated_mix__mha_block_cached__swiglu_ffn__decode_kernel"
HEADER = open(os.path.join(os.path.dirname(os.path.abspath(__file__)), "header.txt")).read()

NSL = 16
RING = NSL * 8192
FL = RING
QP = FL + 256
OP = QP + 2048
HB = OP + 2048
ST = HB + 2048
LDS_BYTES = ST + 4096
WP = 0
NSTEP = 512
NFFN = 36
DPPF = "row_mask:0xf bank_mask:0xf"
import struct
def f32(x): return "0x%08x" % struct.unpack("<I", struct.pack("<f", x))[0]
LOG2E = 1.4426950408889634

def gen(R=20, R0=40, head=16, R2=40, tail=16, stamp=0, wown=2, csleep=1, kvbits="nt", ffnbits="nt", dry=0):
    L = []
    def A(s=""):
        for x in s.split("\n"): L.append(x if (x.endswith(":") or x.startswith((".", ";"))) else "  " + x.strip())
    def srd(d, lo, hi, size):
        A(f"s_mov_b32 s{d}, s{lo}"); A(f"s_and_b32 s{d+1}, s{hi}, 0xffff"); A(f"s_mov_b32 s{d+2}, {size}"); A(f"s_mov_b32 s{d+3}, 0x20000")
    def srd_off(d, lo, hi, soff, size):
        A(f"s_add_u32 s{d}, s{lo}, s{soff}"); A(f"s_addc_u32 s{d+1}, s{hi}, 0"); A(f"s_and_b32 s{d+1}, s{d+1}, 0xffff")
        A(f"s_mov_b32 s{d+2}, {size}"); A(f"s_mov_b32 s{d+3}, 0x20000")
    def masks(base, t0, t1):
        A(f"v_and_b32 v{t0}, 1, v0"); A(f"v_lshlrev_b32 v{t0}, 4, v{t0}"); A(f"v_mov_b32 v{t1}, 0xffff")
        A(f"v_lshlrev_b32 v{t0}, v{t0}, v{t1}"); A(f"v_bfe_u32 v{t1}, v0, 1, 2")
        for r in range(4):
            A(f"v_cmp_eq_u32 vcc, {r}, v{t1}"); A("s_nop 1"); A(f"v_cndmask_b32 v{base+r}, 0, v{t0}, vcc")
    def xrow(op, u, w):
        for sw in ("v_permlane16_swap_b32", "v_permlane32_swap_b32"):
            A(f"v_mov_b32 v{w}, v{u}"); A("s_nop 1"); A(f"{sw} v{w}, v{u}"); A(f"{op} v{u}, v{u}, v{w}")
    def stampat(k):
        if stamp:
            A("s_memrealtime s[90:91]"); A("s_waitcnt lgkmcnt(0)"); A(f"v_writelane_b32 v255, s90, {k}")
    def stampout():
        if stamp:
            A("s_getreg_b32 s90, hwreg(HW_REG_XCC_ID)"); A("v_writelane_b32 v255, s90, 63")
            A("s_mov_b32 s92, s28"); A("s_and_b32 s93, s29, 0xffff"); A("s_mov_b32 s94, 0x400000"); A("s_mov_b32 s95, 0x20000")
            A("s_lshl_b32 s90, s2, 3"); A("s_add_u32 s90, s90, s3"); A("s_lshl_b32 s90, s90, 8"); A("s_add_u32 s90, s90, 0x100000")
            A("v_lshlrev_b32 v254, 2, v0"); A("s_mov_b64 exec, -1")
            A("buffer_store_dword v255, v254, s[92:95], s90 offen")

    A(HEADER.rstrip("\n"))
    A(f"; @launch grid=(256,1,1) block=(512,1,1) lds={LDS_BYTES}")
    A('.amdgcn_target "amdgcn-amd-amdhsa--gfx950"')
    A(".text"); A(f".globl {KNAME}"); A(".p2align 8"); A(f".type {KNAME},@function"); A(f"{KNAME}:")
    A("s_cmp_ge_u32 s2, 256"); A("s_cbranch_scc1 L_done")
    A("s_load_dwordx16 s[4:19], s[0:1], 0")
    A("s_load_dwordx8 s[20:27], s[0:1], 64")
    A("s_load_dwordx2 s[28:29], s[0:1], 96")
    A("v_lshrrev_b32 v1, 6, v0")
    A("v_and_b32 v0, 63, v0")
    A("v_readfirstlane_b32 s3, v1")
    A("s_lshr_b32 s30, s2, 5")
    A("s_and_b32 s31, s2, 31")
    if stamp: A("v_mov_b32 v255, 0")
    stampat(0)
    A("s_cmp_eq_u32 s3, 0"); A("s_cbranch_scc1 L_loader")
    A("s_cmp_lt_u32 s3, 3"); A("s_cbranch_scc1 L_cons")
    A("s_cmp_eq_u32 s3, 7"); A("s_cbranch_scc1 L_ffn")

    W = 64
    A("s_sub_u32 s44, s3, 3")
    A("v_lshrrev_b32 v1, 4, v0")
    A("v_and_b32 v2, 15, v0")
    A("v_lshlrev_b32 v3, 13, v1")
    A("v_lshl_add_u32 v3, v2, 4, v3")
    A("s_mul_i32 s45, s44, 144")
    A("v_lshl_add_u32 v11, v2, 2, v1")
    A("v_add_u32 v11, s45, v11")
    A("v_lshlrev_b32 v11, 1, v11")
    A("s_lshl_b32 s46, s45, 13")
    A("s_lshl_b32 s47, s31, 8")
    A("s_add_u32 s46, s46, s47")
    A("s_mul_i32 s47, s30, 1152")
    A("s_waitcnt lgkmcnt(0)")
    srd(32, 10, 11, 576*8192)
    srd_off(36, 4, 5, 47, 1152)
    for u in range(3):
        A(f"buffer_load_ushort v{8+u}, v11, s[36:39], 0 offen offset:{128*u}")
    for j in range(36):
        A(f"buffer_load_dwordx4 v[{W+4*j}:{W+4*j+3}], v3, s[32:35], s46 offen")
        if j < 35: A("s_add_u32 s46, s46, 32768")
    masks(4, 12, 13)
    A("s_barrier")
    A("s_waitcnt vmcnt(36)")
    for u in range(3): A(f"v_lshl_or_b32 v{8+u}, v{8+u}, 16, v{8+u}")
    A("s_nop 1")
    def qands(j):
        s = 16 + 4*(j & 1)
        for r in range(4):
            A(f"v_and_b32_dpp v{s+r}, v{8+(j>>4)}, v{4+r} row_newbcast:{j&15} {DPPF}")
    qands(0)
    for j in range(36):
        if j < 35: qands(j+1)
        else: A("s_nop 0")
        A(f"s_waitcnt vmcnt({35-j})")
        s = 16 + 4*(j & 1)
        A(f"v_mfma_f32_16x16x32_bf16 v[24:27], v[{s}:{s+3}], v[{W+4*j}:{W+4*j+3}], {'0' if j == 0 else 'v[24:27]'}")
    A("v_and_b32 v12, 1, v1")
    A("v_lshlrev_b32 v12, 4, v12")
    A("v_lshl_add_u32 v12, v2, 5, v12")
    A("s_lshl_b32 s45, s44, 9")
    A(f"s_add_u32 s45, s45, {QP}")
    A("v_add_u32 v13, s45, v12")
    A(f"v_mov_b32 v14, {FL}")
    A("v_mov_b32 v15, 1")
    A("s_nop 1")
    A("ds_write_b128 v13, v[24:27]")
    A("s_waitcnt lgkmcnt(0)")
    A("s_mov_b64 exec, 1")
    A("ds_add_u32 v14, v15 offset:16")
    A("s_mov_b64 exec, -1")
    stampat(1)
    srd(40, 22, 23, 1152)
    srd(32, 12, 13, 4096*1152)
    A("v_lshlrev_b32 v11, 4, v0")
    A("buffer_load_dwordx4 v[28:31], v11, s[36:39], 0 offen")
    A("buffer_load_dwordx4 v[32:35], v11, s[36:39], 0 offen offset:1024")
    A("buffer_load_dwordx4 v[36:39], v11, s[40:43], 0 offen")
    A("buffer_load_dwordx4 v[40:43], v11, s[40:43], 0 offen offset:1024")
    A("v_mul_u32_u24 v3, 2304, v1")
    A("v_lshl_add_u32 v3, v2, 4, v3")
    A("s_mul_i32 s46, s31, 147456")
    A("s_mul_i32 s47, s44, 36864")
    A("s_add_u32 s46, s46, s47")
    for jj in range(4):
        for t in range(9):
            A(f"s_waitcnt vmcnt({wown-1})")
            r = W + 4*(9*jj + t)
            A(f"buffer_load_dwordx4 v[{r}:{r+3}], v3, s[32:35], s46 offen offset:{256*t}")
        if jj < 3: A("s_add_u32 s46, s46, 9216")
    A("v_dot2_f32_bf16 v44, v28, v36, 0")
    for i in range(1, 8): A(f"v_dot2_f32_bf16 v44, v{28+i}, v{36+i}, v44")
    A("s_nop 2")
    for k in (1, 2, 4, 8):
        A(f"v_add_f32_dpp v44, v44, v44 row_ror:{k} {DPPF}"); A("s_nop 1")
    xrow("v_add_f32", 44, 45)
    A(f"v_mul_f32 v44, {f32(-LOG2E)}, v44")
    A("v_exp_f32 v44, v44"); A("s_nop 0")
    A("v_add_f32 v44, 1.0, v44")
    A("v_rcp_f32 v44, v44")
    A("v_lshrrev_b32 v45, 3, v0")
    A("v_lshlrev_b32 v45, 6, v45")
    A("s_lshl_b32 s45, s44, 4")
    A(f"s_add_u32 s45, s45, {OP}")
    A("v_add_u32 v45, s45, v45")
    A(f"v_mov_b32 v46, {OP+512}")
    A("s_mul_i32 s45, s44, 4608")
    A("v_add_u32 v47, s45, v12")
    A("s_lshl_b32 s45, s44, 8")
    A("v_lshl_add_u32 v48, v0, 2, s45")
    srd(36, 28, 29, 18432)
    srd(40, 26, 27, 256)
    srd(48, 24, 25, 9216)
    A("s_mul_i32 s46, s30, 2304")
    A("s_waitcnt vmcnt(0)")
    stampat(2)
    A("s_barrier")
    stampat(3)
    A("ds_read_b64 v[50:51], v46")
    A("ds_read_b64 v[52:53], v46 offset:1024")
    A("ds_read_b128 v[56:59], v45")
    A("ds_read_b128 v[60:63], v45 offset:1024")
    A("s_waitcnt lgkmcnt(2)")
    A("v_max_f32 v54, v50, v52")
    A("v_sub_f32 v50, v50, v54"); A("v_sub_f32 v52, v52, v54")
    A("v_exp_f32 v50, v50"); A("v_exp_f32 v52, v52"); A("s_nop 0")
    A("v_mul_f32 v51, v50, v51"); A("v_fmac_f32 v51, v52, v53")
    A("v_rcp_f32 v51, v51"); A("s_nop 0")
    A("v_mul_f32 v50, v50, v51"); A("v_mul_f32 v52, v52, v51")
    A("s_waitcnt lgkmcnt(0)")
    for j in range(4):
        A(f"v_mul_f32 v{56+j}, v50, v{56+j}"); A(f"v_fmac_f32 v{56+j}, v52, v{60+j}")
    for j in range(4): A(f"v_cvt_pk_bf16_f32 v{56+j}, v{56+j}, v{56+j}")
    ACC = 208
    for jj in range(4):
        for r in range(4): A(f"v_and_b32 v{16+4*jj+r}, v{56+jj}, v{4+r}")
    A("s_nop 0")
    for jj in range(4):
        for t in range(9):
            r = W + 4*(9*jj + t)
            A(f"v_mfma_f32_16x16x32_bf16 v[{ACC+4*t}:{ACC+4*t+3}], v[{16+4*jj}:{19+4*jj}], v[{r}:{r+3}], {'0' if jj == 0 else f'v[{ACC+4*t}:{ACC+4*t+3}]'}")
    A("s_mov_b32 exec_lo, -1"); A("s_mov_b32 exec_hi, 0")
    for t in range(9):
        if t == 4: A("s_mov_b32 exec_lo, 0x00ff00ff"); A("s_mov_b32 exec_hi, 0xff00ff00")
        if t == 5: A("s_mov_b32 exec_lo, 0"); A("s_mov_b32 exec_hi, -1")
        if t == 8: A("s_nop 0")
        A(f"ds_write_b128 v47, v[{ACC+4*t}:{ACC+4*t+3}] offset:{512*t}")
    A("s_mov_b64 exec, -1")
    A("s_waitcnt lgkmcnt(0)")
    A("s_barrier")
    def colsum(i, base):
        for a in range(4):
            A(f"ds_read2st64_b32 v[{base+2*a}:{base+2*a+1}], v48 offset0:{18*a+4*i} offset1:{18*a+4*i+9}")
    def coladd(i, base):
        A(f"v_add_f32 v{base}, v{base}, v{base+1}"); A(f"v_add_f32 v{base+2}, v{base+2}, v{base+3}")
        A(f"v_add_f32 v{base+4}, v{base+4}, v{base+5}"); A(f"v_add_f32 v{base+6}, v{base+6}, v{base+7}")
        A(f"v_add_f32 v{base}, v{base}, v{base+2}"); A(f"v_add_f32 v{base+4}, v{base+4}, v{base+6}")
        A(f"v_add_f32 v{base}, v{base}, v{base+4}"); A(f"v_mul_f32 v{base}, v44, v{base}")
        A(f"buffer_atomic_add_f32 v{base}, v48, s[36:39], s46 offen offset:{1024*i}")
    colsum(0, 64); colsum(1, 72)
    A("s_cmp_lg_u32 s44, 0"); A("s_cbranch_scc1 L_a_two")
    colsum(2, 80)
    A("s_waitcnt lgkmcnt(0)")
    coladd(2, 80)
    A("L_a_two:")
    A("s_waitcnt lgkmcnt(0)")
    coladd(0, 64); coladd(1, 72)
    A("s_waitcnt vmcnt(0)")
    A("s_barrier")
    stampat(4)
    A("s_cmp_lg_u32 s44, 0"); A("s_cbranch_scc1 L_a_wait")
    A("s_mov_b64 exec, 1")
    A("buffer_atomic_add v15, off, s[40:43], 0 offset:192 sc0")
    A("s_waitcnt vmcnt(0)")
    A("ds_write_b32 v14, v15 offset:20")
    A("s_mov_b64 exec, -1")
    A("s_waitcnt lgkmcnt(0)")
    A("L_a_wait:")
    A("s_barrier")
    A("ds_read_b32 v15, v14 offset:20")
    A("v_lshlrev_b32 v49, 2, v48")
    A("v_lshlrev_b32 v48, 1, v48")
    A("s_waitcnt lgkmcnt(0)")
    A("v_readfirstlane_b32 s47, v15")
    A("s_cmp_lg_u32 s47, 255")
    stampat(5) if False else None
    A("s_cbranch_scc1 L_a_end")
    A("s_mov_b32 s45, 0")
    for i in range(5):
        A(f"buffer_load_dwordx4 v[{64+4*i}:{67+4*i}], v49, s[36:39], s45 offen sc1")
        if i < 4: A("s_add_u32 s45, s45, 4096")
    A("s_mov_b32 s45, 0")
    for i in range(5):
        A(f"s_waitcnt vmcnt({4})")
        A(f"v_cvt_pk_bf16_f32 v{84+2*i}, v{64+4*i}, v{65+4*i}")
        A(f"v_cvt_pk_bf16_f32 v{85+2*i}, v{66+4*i}, v{67+4*i}")
        A(f"buffer_store_dwordx2 v[{84+2*i}:{85+2*i}], v48, s[48:51], s45 offen")
        if i < 4: A("s_add_u32 s45, s45, 2048")
    A("L_a_end:")
    stampat(5)
    stampout()
    A("s_endpgm")

    A("L_loader:")
    A("s_setprio 3")
    A("v_bfe_u32 v1, v0, 2, 2"); A("v_lshlrev_b32 v1, 8, v1")
    A("v_lshrrev_b32 v2, 4, v0"); A("v_lshl_add_u32 v1, v2, 6, v1")
    A("v_and_b32 v2, 3, v0"); A("v_lshl_add_u32 v1, v2, 4, v1")
    A("v_lshlrev_b32 v2, 4, v0")
    A(f"v_mov_b32 v3, {FL}")
    A("v_lshl_add_u32 v6, v0, 2, v3")
    A("v_mov_b32 v4, 0"); A("v_mov_b32 v5, 0")
    A("ds_write_b32 v6, v4")
    A("s_lshl_b32 s44, s2, 21")
    A("s_mov_b32 s40, 0"); A("s_mov_b32 s41, 0"); A("s_mov_b32 s42, 0")
    A("s_waitcnt lgkmcnt(0)")
    srd_off(32, 6, 7, 44, 1 << 21)
    srd_off(36, 8, 9, 44, 1 << 21)
    def lstep(RR, label, check, publish):
        if check:
            A("s_waitcnt lgkmcnt(0)")
            A("v_min_u32 v4, v4, v5"); A("s_nop 0")
            A("v_readfirstlane_b32 s45, v4")
            A(f"s_add_u32 s45, s45, {NSL}")
            A("s_cmp_gt_u32 s45, s41")
            A(f"s_cbranch_scc0 {label}_full")
            A(f"{label}_ok:")
        for idx in range(8):
            if RR: A(f"s_waitcnt vmcnt({RR-1})")
            if idx == 0: A("s_mov_b32 m0, s42")
            if idx == 4: A("s_add_u32 m0, s42, 4096")
            if idx in (0, 4): A("s_nop 0")
            sr, vo = ("s[32:35]", 1) if idx < 4 else ("s[36:39]", 2)
            A(f"buffer_load_dwordx4 v{vo}, {sr}, s40 offen offset:{(idx%4)*1024} {kvbits} lds")
            if publish and (idx - RR + 1) % 8 == 0:
                d = (RR - 1 - idx) // 8
                A(f"s_sub_u32 s45, s41, {d}")
                A("s_max_i32 s45, s45, 0")
                A("v_mov_b32 v6, s45")
                A("ds_write_b32 v3, v6")
                A("ds_read_b64 v[4:5], v3 offset:8")
        A("s_add_u32 s40, s40, 4096")
        A("s_add_u32 s42, s42, 8192")
        A(f"s_and_b32 s42, s42, {RING-1}")
        A("s_add_u32 s41, s41, 1")
    fulls = []
    def lloop(RR, label, end):
        A(f"{label}:")
        lstep(RR, label, True, True)
        A(f"s_cmp_lt_u32 s41, {end}"); A(f"s_cbranch_scc1 {label}")
        fulls.append(label)
    lstep(0, "", False, False)
    lstep(0, "", False, False)
    A("s_barrier")
    if head > 2: lloop(R0, "L_lhead", head)
    lloop(R, "L_lmain", NSTEP - tail)
    if tail: lloop(R2, "L_ltail", NSTEP)
    stampat(1)
    RL = R2 if tail else R
    for k in range((RL + 6)//8, -1, -1):
        A(f"s_waitcnt vmcnt({min(63, 8*k)})")
        A(f"v_mov_b32 v6, {NSTEP - k}")
        A("ds_write_b32 v3, v6")
    A("s_waitcnt lgkmcnt(0)")
    stampat(2)
    stampout()
    A("s_endpgm")
    for label in fulls:
        A(f"{label}_full:")
        A("s_sleep 1")
        A("ds_read_b64 v[4:5], v3 offset:8")
        A("s_waitcnt lgkmcnt(0)")
        A("v_min_u32 v4, v4, v5"); A("s_nop 0")
        A("v_readfirstlane_b32 s45, v4")
        A(f"s_add_u32 s45, s45, {NSL}")
        A("s_cmp_gt_u32 s45, s41")
        A(f"s_cbranch_scc0 {label}_full")
        A(f"s_branch {label}_ok")

    A("L_cons:")
    A("s_setprio 2")
    Q = 16; S = 32; O = 36; AO = 40; K = 64; V = 80
    masks(4, 8, 9)
    A("s_sub_u32 s40, s3, 1")
    A("s_mov_b32 s41, 0")
    A("v_lshlrev_b32 v1, 4, v0")
    A(f"v_mov_b32 v2, {FL}")
    A("s_lshl_b32 s42, s40, 2")
    A(f"s_add_u32 s42, s42, {FL+8}")
    A("v_mov_b32 v3, s42")
    A(f"v_mov_b32 v8, {f32(128**-0.5 * LOG2E)}")
    A(f"v_mov_b32 v9, {f32(-3.0e38)}")
    A("v_mov_b32 v10, 0")
    for r in range(4): A(f"v_mov_b32 v{O+r}, 0")
    A("v_lshrrev_b32 v11, 4, v0"); A("v_lshlrev_b32 v11, 2, v11")
    A("v_and_b32 v12, 3, v0"); A("v_add_u32 v11, v11, v12")
    A("v_lshlrev_b32 v11, 5, v11")
    A(f"v_add_u32 v11, {QP}, v11")
    A("v_bfe_u32 v12, v0, 2, 2")
    A("s_barrier")
    A("L_cq:")
    A("ds_read_b32 v13, v2 offset:16")
    A("s_waitcnt lgkmcnt(0)")
    A("v_readfirstlane_b32 s43, v13")
    A("s_cmp_ge_u32 s43, 4"); A("s_cbranch_scc1 L_cq_ok")
    A("s_sleep 1"); A("s_branch L_cq")
    A("L_cq_ok:")
    for a in range(4):
        A(f"ds_read_b128 v[{K+8*a}:{K+8*a+3}], v11 offset:{512*a}")
        A(f"ds_read_b128 v[{K+8*a+4}:{K+8*a+7}], v11 offset:{512*a+16}")
    A("s_waitcnt lgkmcnt(0)")
    for e in range(8):
        A(f"v_add_f32 v{K+e}, v{K+e}, v{K+8+e}"); A(f"v_add_f32 v{K+16+e}, v{K+16+e}, v{K+24+e}")
    for e in range(8): A(f"v_add_f32 v{K+e}, v{K+e}, v{K+16+e}")
    for r in range(4): A(f"v_cvt_pk_bf16_f32 v{K+8+r}, v{K+2*r}, v{K+2*r+1}")
    for j in range(4):
        A(f"v_cmp_eq_u32 vcc, {j}, v12"); A("s_nop 1")
        for r in range(4): A(f"v_cndmask_b32 v{Q+4*j+r}, 0, v{K+8+r}, vcc")
    stampat(1)
    A("L_cloop:")
    A("s_cmp_lt_u32 s40, s41"); A("s_cbranch_scc0 L_cpoll")
    A("L_cgo:")
    A(f"s_and_b32 s42, s40, {NSL-1}"); A("s_lshl_b32 s42, s42, 13")
    A("v_add_u32 v13, s42, v1")
    A("s_add_u32 s40, s40, 2")
    for i in range(8): A(f"ds_read_b128 v[{K+4*i}:{K+4*i+3}], v13 offset:{1024*i}")
    A("v_mov_b32 v14, s40")
    for j in range(4):
        A(f"s_waitcnt lgkmcnt({7-j})")
        A(f"v_mfma_f32_16x16x32_bf16 v[{S}:{S+3}], v[{K+4*j}:{K+4*j+3}], v[{Q+4*j}:{Q+4*j+3}], {'0' if j == 0 else f'v[{S}:{S+3}]'}")
    A("s_waitcnt lgkmcnt(0)")
    A("ds_write_b32 v3, v14")
    A("s_nop 5")
    A(f"v_mul_f32_dpp v56, v{S}, v8 quad_perm:[0,0,0,0] {DPPF}")
    A(f"v_mul_f32_dpp v57, v{S+1}, v8 quad_perm:[1,1,1,1] {DPPF}")
    A("s_nop 0")
    A(f"v_fmac_f32_dpp v56, v{S+2}, v8 quad_perm:[2,2,2,2] {DPPF}")
    A(f"v_fmac_f32_dpp v57, v{S+3}, v8 quad_perm:[3,3,3,3] {DPPF}")
    A("v_add_f32 v56, v56, v57")
    A("v_cmp_gt_f32 vcc, v56, v9")
    A("s_cbranch_vccnz L_cresc")
    A("L_cback:")
    A("v_sub_f32 v57, v56, v9")
    A("v_exp_f32 v57, v57"); A("s_nop 0")
    A("v_cvt_pk_bf16_f32 v58, v57, v57")
    A("v_add_f32 v10, v10, v57")
    A("s_nop 0")
    def pands(j):
        for r in range(4): A(f"v_and_b32_dpp v{AO+4*j+r}, v58, v{4+r} row_newbcast:{4*j} {DPPF}")
    def pv(j): A(f"v_mfma_f32_16x16x32_bf16 v[{O}:{O+3}], v[{AO+4*j}:{AO+4*j+3}], v[{V+4*j}:{V+4*j+3}], v[{O}:{O+3}]")
    pands(0); pands(1); pv(0); pands(2); pv(1); pands(3); pv(2)
    A(f"s_cmp_lt_u32 s40, {NSTEP}")
    pv(3)
    A("s_cbranch_scc1 L_cloop")
    stampat(2)
    A(f"v_add_f32_dpp v10, v10, v10 row_ror:4 {DPPF}"); A("s_nop 1")
    A(f"v_add_f32_dpp v10, v10, v10 row_ror:8 {DPPF}")
    xrow("v_add_f32", 10, 11)
    A("v_bfe_u32 v12, v0, 4, 1"); A("v_lshlrev_b32 v12, 8, v12")
    A("v_and_b32 v13, 15, v0"); A("v_lshl_add_u32 v12, v13, 2, v12")
    A("s_sub_u32 s42, s3, 1"); A("s_lshl_b32 s42, s42, 10"); A(f"s_add_u32 s42, s42, {OP}")
    A("v_add_u32 v12, s42, v12")
    A("v_mov_b32 v13, s42")
    A("v_mov_b32 v14, v9"); A("v_mov_b32 v15, v10")
    for r in range(4): A(f"ds_write_b32 v12, v{O+r} offset:{64*r}")
    A("ds_write_b64 v13, v[14:15] offset:512")
    A("s_waitcnt lgkmcnt(0)")
    stampout()
    A("s_endpgm")
    A("L_cpoll:")
    A("ds_read_b32 v13, v2")
    A("s_waitcnt lgkmcnt(0)")
    A("v_readfirstlane_b32 s41, v13")
    A("s_cmp_lt_u32 s40, s41"); A("s_cbranch_scc1 L_cgo")
    A(f"s_sleep {csleep}"); A("s_branch L_cpoll")
    A("L_cresc:")
    A(f"v_max_f32_dpp v57, v56, v56 row_ror:4 {DPPF}"); A("s_nop 1")
    A(f"v_max_f32_dpp v57, v57, v57 row_ror:8 {DPPF}")
    xrow("v_max_f32", 57, 58)
    A("v_max_f32 v57, v57, v9")
    A("v_sub_f32 v58, v9, v57")
    A("v_exp_f32 v58, v58")
    A("v_mov_b32 v9, v57")
    A("v_mul_f32 v10, v10, v58")
    for r in range(4): A(f"v_mul_f32 v{O+r}, v{O+r}, v58")
    A("s_branch L_cback")

    A("L_ffn:")
    A("v_mov_b32 v1, 1")
    A("v_lshlrev_b32 v2, 4, v0")
    A("s_waitcnt lgkmcnt(0)")
    srd(32, 26, 27, 256)
    srd(36, 28, 29, 18432)
    A("s_mov_b64 exec, 1")
    A("buffer_atomic_add v1, off, s[32:35], 0 sc0")
    A("s_mov_b64 exec, -1")
    A("s_barrier")
    A("s_waitcnt vmcnt(0)")
    A("v_readfirstlane_b32 s44, v1")
    A("s_cmp_lg_u32 s44, 0"); A("s_cbranch_scc1 L_f_nozero")
    for r in range(4): A(f"v_mov_b32 v{4+r}, 0")
    A("s_mov_b32 s44, 0")
    for i in range(18):
        A(f"buffer_store_dwordx4 v[4:7], v2, s[36:39], s44 offen offset:{1024*(i%4)} sc1")
        if i % 4 == 3: A("s_add_u32 s44, s44, 4096")
    A("v_mov_b32 v1, 1")
    A("s_waitcnt vmcnt(0)")
    A("s_mov_b64 exec, 1")
    A("buffer_store_dword v1, off, s[32:35], 0 offset:64 sc1")
    A("s_mov_b64 exec, -1")
    A("L_f_nozero:")
    A(f"s_cmp_ge_u32 s2, {NFFN}"); A("s_cbranch_scc1 L_f_flag")
    srd(40, 4, 5, 9216)
    srd(44, 22, 23, 1152)
    srd(48, 16, 17, 576*9216)
    srd(52, 18, 19, 576*9216)
    srd(56, 20, 21, 4608*1152)
    A("s_mov_b32 s60, 0x05040100"); A("s_mov_b32 s61, 0x07060302")
    A("v_lshrrev_b32 v3, 4, v0")
    A("v_and_b32 v4, 15, v0")
    A("v_and_b32 v5, 7, v0")
    A("v_mul_u32_u24 v5, 1152, v5")
    A("v_lshl_add_u32 v5, v3, 4, v5")
    A("v_lshlrev_b32 v6, 4, v3")
    A("v_mul_u32_u24 v7, 73728, v3")
    A("v_lshl_add_u32 v7, v4, 4, v7")
    G = 64; U = 96; Z = 128; WB = 16; BT = 48
    for i in range(68): A(f"v_mov_b32 v{G+i}, 0")
    A("s_lshl_b32 s62, s2, 8")
    A("s_mov_b32 s63, 0")
    def tr_mfma(wb, a, acc, first):
        for e in range(8):
            b = BT + 4*(e & 1)
            for q in range(4):
                A(f"v_perm_b32 v{b+q}, v{wb+4*(2*q+1)+(e>>1)}, v{wb+4*(2*q)+(e>>1)}, s{60+(e&1)}")
            A("s_nop 1")
            A(f"v_mfma_f32_16x16x32_bf16 v[{acc+4*e}:{acc+4*e+3}], v[{a}:{a+3}], v[{b}:{b+3}], {'0' if first else f'v[{acc+4*e}:{acc+4*e+3}]'}")
    A("L_f1:")
    A("buffer_load_dwordx4 v[8:11], v5, s[40:43], s63 offen")
    A("buffer_load_dwordx4 v[12:15], v6, s[44:47], s63 offen")
    A("s_mov_b32 s64, s62")
    for e in range(8):
        A(f"buffer_load_dwordx4 v[{WB+4*e}:{WB+4*e+3}], v7, s[48:51], s64 offen {ffnbits}")
        if e < 7: A("s_add_u32 s64, s64, 9216")
    A("s_waitcnt vmcnt(0)")
    A(f"v_mfma_f32_16x16x32_bf16 v[{Z}:{Z+3}], v[8:11], v[12:15], v[{Z}:{Z+3}]")
    tr_mfma(WB, 8, G, False)
    A("s_mov_b32 s64, s62")
    for e in range(8):
        A(f"buffer_load_dwordx4 v[{WB+4*e}:{WB+4*e+3}], v7, s[52:55], s64 offen {ffnbits}")
        if e < 7: A("s_add_u32 s64, s64, 9216")
    A("s_waitcnt vmcnt(0)")
    tr_mfma(WB, 8, U, False)
    A(f"s_add_u32 s62, s62, {32*9216}")
    A("s_add_u32 s63, s63, 64")
    A("s_cmp_lt_u32 s63, 1152"); A("s_cbranch_scc1 L_f1")
    A("s_nop 7")
    for r in range(4): A(f"v_mul_f32 v{Z+r}, {f32(LOG2E)}, v{Z+r}")
    for r in range(4): A(f"v_exp_f32 v{Z+r}, v{Z+r}")
    A("s_nop 0")
    for r in range(4): A(f"v_add_f32 v{Z+r}, 1.0, v{Z+r}")
    for r in range(4): A(f"v_rcp_f32 v{Z+r}, v{Z+r}")
    for e in range(8):
        for r in range(4): A(f"v_mul_f32 v{16+r}, {f32(-LOG2E)}, v{G+4*e+r}")
        for r in range(4): A(f"v_exp_f32 v{16+r}, v{16+r}")
        for r in range(4): A(f"v_mul_f32 v{G+4*e+r}, v{G+4*e+r}, v{U+4*e+r}")
        for r in range(4): A(f"v_add_f32 v{16+r}, 1.0, v{16+r}")
        for r in range(4): A(f"v_rcp_f32 v{16+r}, v{16+r}")
        for r in range(4): A(f"v_mul_f32 v{G+4*e+r}, v{G+4*e+r}, v{Z+r}")
        for r in range(4): A(f"v_mul_f32 v{G+4*e+r}, v{G+4*e+r}, v{16+r}")
    A("v_and_b32 v5, 1, v3")
    A("v_lshlrev_b32 v6, 10, v5")
    A("v_lshl_add_u32 v6, v4, 4, v6")
    A(f"v_add_u32 v6, {HB}, v6")
    for r in range(4):
        for q in range(4): A(f"v_cvt_pk_bf16_f32 v{16+4*r+q}, v{G+8*q+r}, v{G+8*q+4+r}")
        A(f"ds_write_b128 v6, v[{16+4*r}:{19+4*r}] offset:{256*r}")
    A("v_and_b32 v6, 7, v0")
    A("v_bfe_u32 v7, v0, 3, 1")
    A("v_lshl_add_u32 v8, v7, 2, v3")
    A("v_lshlrev_b32 v9, 4, v8")
    A("v_lshl_add_u32 v9, v6, 8, v9")
    A(f"v_add_u32 v9, {HB}, v9")
    A("v_mul_u32_u24 v172, 9216, v8")
    A("v_lshl_add_u32 v172, v6, 4, v172")
    A("v_lshlrev_b32 v173, 11, v7")
    A("v_lshl_add_u32 v173, v6, 8, v173")
    A("v_lshl_add_u32 v173, v5, 4, v173")
    A(f"v_add_u32 v173, {ST}, v173")
    A("v_lshlrev_b32 v174, 5, v0")
    A(f"v_add_u32 v174, {ST}, v174")
    A("v_lshlrev_b32 v164, 2, v0")
    for b in range(1, 8): A(f"v_add_u32 v{164+b}, {2304*b}, v164")
    A("s_waitcnt lgkmcnt(0)")
    A("ds_read_b128 v[12:15], v9 offset:128")
    A("ds_read_b128 v[8:11], v9")
    A(f"s_mul_i32 s62, s2, {128*1152}")
    A("s_mov_b32 s63, 0")
    A("L_f_flag:")
    A("buffer_load_dword v1, off, s[32:35], 0 offset:64 sc1")
    A("s_waitcnt vmcnt(0)")
    A("v_readfirstlane_b32 s65, v1")
    A("s_cmp_lg_u32 s65, 0"); A("s_cbranch_scc1 L_f_flagok")
    A("s_sleep 8"); A("s_branch L_f_flag")
    A("L_f_flagok:")
    A(f"s_cmp_ge_u32 s2, {NFFN}"); A("s_cbranch_scc1 L_f_end")
    A("L_f2:")
    A("s_mov_b32 s64, s62")
    for sp in range(2):
        wb = (16, 132)[sp]
        for e in range(8):
            A(f"buffer_load_dwordx4 v[{wb+4*e}:{wb+4*e+3}], v172, s[56:59], s64 offen {ffnbits}")
            if e < 7: A("s_add_u32 s64, s64, 1152")
        if sp == 0: A(f"s_add_u32 s64, s64, {57*1152}")
    A("s_waitcnt vmcnt(8) lgkmcnt(0)")
    tr_mfma(16, 8, G, True)
    A("s_waitcnt vmcnt(0)")
    tr_mfma(132, 12, G, False)
    A("s_mov_b32 exec_lo, 0x00ff00ff"); A("s_mov_b32 exec_hi, 0xff00ff00")
    A("s_nop 5")
    for e in range(8): A(f"ds_write_b128 v173, v[{G+4*e}:{G+4*e+3}] offset:{32*e}")
    A("s_mov_b64 exec, -1")
    A("s_waitcnt lgkmcnt(0)")
    A("ds_read_b128 v[96:99], v174"); A("ds_read_b128 v[100:103], v174 offset:16")
    A("ds_read_b128 v[104:107], v174 offset:2048"); A("ds_read_b128 v[108:111], v174 offset:2064")
    A("s_waitcnt lgkmcnt(0)")
    for b in range(8): A(f"v_add_f32 v{96+b}, v{96+b}, v{104+b}")
    for b in range(8): A(f"buffer_atomic_add_f32 v{96+b}, v{164+b}, s[36:39], s63 offen")
    A("s_add_u32 s62, s62, 128")
    A("s_add_u32 s63, s63, 256")
    A("s_cmp_lt_u32 s63, 2304"); A("s_cbranch_scc1 L_f2")
    A("L_f_end:")
    A("s_waitcnt vmcnt(0)")
    stampat(1)
    stampout()
    A("L_done:")
    A("s_endpgm")
    A('.section .rodata,"a"'); A(".p2align 6"); A(f".amdhsa_kernel {KNAME}")
    for d in ("next_free_vgpr 256", "next_free_sgpr 96", "accum_offset 256", "group_segment_fixed_size 0", "kernarg_size 104",
              "user_sgpr_count 2", "user_sgpr_kernarg_segment_ptr 1", "system_sgpr_workgroup_id_x 1"):
        A("  .amdhsa_" + d)
    A(".end_amdhsa_kernel")
    return "\n".join(L) + "\n"

if __name__ == "__main__":
    outs = []
    for spec in sys.argv[1:]:
        path, _, params = spec.partition(":")
        kw = {}
        for kv in filter(None, params.split(",")):
            k, v = kv.split("=")
            kw[k] = v.replace("+", " ") if k.endswith("bits") else int(v)
        text = gen(**kw)
        errs = hazard.check(text)
        if errs:
            print("\n".join(errs), file=sys.stderr); sys.exit(1)
        open(path, "w").write(text)
        outs.append(path)
    print(" ".join(outs))
```
